```python
import torch

def _softmax(x, axis=-1):
    return torch.softmax(x, dim=axis)
def _gelu(x):
    return torch.nn.functional.gelu(x, approximate="tanh")
def _silu(x):
    return torch.nn.functional.silu(x)
def _sigmoid(x):
    return torch.sigmoid(x)
def _layernorm(x, axis=-1, eps=1e-5):
    m = x.mean(dim=axis, keepdim=True)
    v = x.var(dim=axis, keepdim=True, unbiased=False)
    return (x - m) / torch.sqrt(v + eps)
def _scatter_add(tgt, idx, src, axis=0):
    return tgt.clone().index_add_(axis, idx, src)
def _segment_sum(src, seg, n):
    out = torch.zeros((n,) + src.shape[1:], dtype=src.dtype)
    return out.index_add_(0, seg, src)
def _pad(x, pw):
    flat = tuple(v for pair in reversed(pw) for v in pair)
    return torch.nn.functional.pad(x, flat)

kernel_name = 'gated_mix__linear_kernel_hedgehog__glu_gated_swiglu__prompt'

def setup_inputs():

    _w = (lambda a: (lambda t: t.to(torch.bfloat16) if t.is_floating_point() else t)(torch.as_tensor(a)))
    def _A_setup():
        B, S, D, H = 1, 2048, 512, 32
        Dh = D // H
        return {
            "x": _w((lambda *s: torch.randn(*s, dtype=torch.bfloat16) * 0.05)(B, S, D)),
            "wqkv": _w((lambda *s: torch.randn(*s, dtype=torch.bfloat16) * 0.8)(D, 3 * D)),
            "w_phi": _w((lambda *s: torch.randn(*s, dtype=torch.bfloat16) * 0.8)(H, Dh, Dh) * (Dh ** -0.5)),
            "wo": _w((lambda *s: torch.randn(*s, dtype=torch.bfloat16) * 0.05)(D, D)),
        }
    _A_in = _A_setup()

    def _B_setup():
        B, S, D, F = 1, 2048, 512, 1792
        return {
            "x": _w((lambda *s: torch.randn(*s, dtype=torch.bfloat16) * 0.05)(B, S, D)),
            "w1": _w((lambda *s: torch.randn(*s, dtype=torch.bfloat16) * 1.6)(D, F) * (2.0 / D) ** 0.5),
            "w3": _w((lambda *s: torch.randn(*s, dtype=torch.bfloat16) * 1.6)(D, F) * (2.0 / D) ** 0.5),
            "w2": _w((lambda *s: torch.randn(*s, dtype=torch.bfloat16) * 1.6)(F, D) * (2.0 / F) ** 0.5),
        }
    _B_in = _B_setup()

    return {
        "A_x": _A_in["x"],
        "A_wqkv": _A_in["wqkv"],
        "A_w_phi": _A_in["w_phi"],
        "A_wo": _A_in["wo"],
        "B_x": _B_in["x"],
        "B_w1": _B_in["w1"],
        "B_w3": _B_in["w3"],
        "B_w2": _B_in["w2"],
        "gate_w": _w((lambda *s: torch.randn(*s, dtype=torch.bfloat16) * 0.05)(512) * 16.0),
    }

def reference(A_x, A_wqkv, A_w_phi, A_wo, B_x, B_w1, B_w3, B_w2, gate_w):
    def _A_ref(x, wqkv, w_phi, wo):
        B, S, D = x.shape
        H = 32; Dh = D // H
        qkv = (lambda x, *d: x.permute(*d))((x @ wqkv).reshape(B, S, 3, H, Dh), 2, 0, 3, 1, 4)
        q, k, v = qkv[0], qkv[1], qkv[2]
        pq = torch.einsum("bhsd,hdf->bhsf", q, w_phi)
        pk = torch.einsum("bhsd,hdf->bhsf", k, w_phi)
        phi_q = torch.concatenate([_softmax(pq, axis=-1), _softmax(-pq, axis=-1)], axis=-1)
        phi_k = torch.concatenate([_softmax(pk, axis=-1), _softmax(-pk, axis=-1)], axis=-1)
        kv = torch.einsum("bhsf,bhsd->bhfd", phi_k, v)
        z  = torch.einsum("bhsf->bhf", phi_k)
        num = torch.einsum("bhqf,bhfd->bhqd", phi_q, kv)
        den = torch.einsum("bhqf,bhf->bhq", phi_q, z)[..., None] + 1e-6
        o = num / den
        return (lambda x, *d: x.permute(*d))(o, 0, 2, 1, 3).reshape(B, S, D) @ wo

    def _B_ref(x, w1, w3, w2):
        gate = torch.einsum("bsd,df->bsf", x, w1)
        up = torch.einsum("bsd,df->bsf", x, w3)
        h = _silu(gate) * up
        out = torch.einsum("bsf,fd->bsd", h, w2)
        return out

    x = A_x
    g = _sigmoid((x * gate_w).sum(-1, keepdims=True))
    a = _A_ref(x, A_wqkv, A_w_phi, A_wo)
    b = _B_ref(x, B_w1, B_w3, B_w2)
    return g * a + (1 - g) * b
```

```python
VCC = ('x', 'vcc'); EXEC = ('x', 'exec'); M0 = ('x', 'm0'); SCC = ('x', 'scc')


class V:
    def __init__(self, i, n=1):
        assert 0 <= i and i + n <= 256, (i, n)
        if n >= 2:
            assert i % 2 == 0, ("unaligned tuple", i, n)
        self.i, self.n = i, n
    def __str__(self):
        return f"v{self.i}" if self.n == 1 else f"v[{self.i}:{self.i+self.n-1}]"
    def regs(self):
        return {('v', self.i + k) for k in range(self.n)}
    def __getitem__(self, k):
        assert 0 <= k < self.n
        return V(self.i + k)
    def sub(self, k, n):
        assert k + n <= self.n
        return V(self.i + k, n)
    def __neg__(self):
        return Neg(self)


class S:
    def __init__(self, i, n=1):
        assert 0 <= i and i + n <= 102
        if n == 2: assert i % 2 == 0
        if n >= 4: assert i % 4 == 0
        self.i, self.n = i, n
    def __str__(self):
        return f"s{self.i}" if self.n == 1 else f"s[{self.i}:{self.i+self.n-1}]"
    def regs(self):
        return {('s', self.i + k) for k in range(self.n)}
    def __getitem__(self, k):
        return S(self.i + k)
    def sub(self, k, n):
        return S(self.i + k, n)
    def __neg__(self):
        return Neg(self)


class Neg:
    def __init__(self, r): self.r = r
    def __str__(self): return f"-{self.r}"
    def regs(self): return self.r.regs()


class Sp:
    def __init__(self, name, key): self.name, self.key = name, key
    def __str__(self): return self.name
    def regs(self): return {self.key}


vcc = Sp('vcc', VCC); m0 = Sp('m0', M0); execr = Sp('exec', EXEC)
exec_lo = Sp('exec_lo', EXEC); exec_hi = Sp('exec_hi', EXEC)


def regs_of(*ops):
    r = set()
    for o in ops:
        if hasattr(o, 'regs'): r |= o.regs()
    return r


def fmt(o):
    if isinstance(o, int):
        return str(o) if -16 <= o <= 64 else hex(o & 0xffffffff)
    if isinstance(o, float):
        return repr(o)
    return str(o)


class Ins:
    __slots__ = ('text', 'rd', 'wr', 'kind', 'tok', 'srcc', 'srcab', 'cost', 'note', 'need', 'stdata')
    def __init__(self, text, rd=(), wr=(), kind='salu', tok=None):
        self.text = text; self.rd = set(rd); self.wr = set(wr); self.kind = kind; self.tok = tok
        self.srcc = set(); self.srcab = set(); self.cost = 1; self.note = None; self.need = None; self.stdata = set()


class Tok:
    n = 0
    def __init__(self, name=''):
        Tok.n += 1; self.name = name or f"t{Tok.n}"


TRANS = ('v_exp_f32', 'v_rcp_f32', 'v_log_f32', 'v_rsq_f32', 'v_sqrt_f32')


def valu(op, dst, *src, extra='', rd_extra=(), wr_extra=()):
    t = f"{op} {fmt(dst)}, " + ", ".join(fmt(s) for s in src) + (" " + extra if extra else "")
    kind = 'trans' if op in TRANS else 'valu'
    rd = regs_of(*src) | set(rd_extra) | {EXEC}
    wr = regs_of(dst) | set(wr_extra)
    if op.startswith('v_fmac'): rd |= regs_of(dst)
    i = Ins(t, rd, wr, kind)
    if kind == 'trans': i.cost = 2
    if 'dpp' in op: i.kind = 'dpp'
    return i


def v_cmp(op, dst, a, b):
    return Ins(f"{op} {fmt(dst)}, {fmt(a)}, {fmt(b)}", regs_of(a, b) | {EXEC}, regs_of(dst), 'valu')


def v_cndmask(dst, f, t, mask):
    op = 'v_cndmask_b32'
    return Ins(f"{op} {fmt(dst)}, {fmt(f)}, {fmt(t)}, {fmt(mask)}", regs_of(f, t, mask) | {EXEC}, regs_of(dst), 'valu')


def v_swap(a, b):
    return Ins(f"v_swap_b32 {a}, {b}", regs_of(a, b) | {EXEC}, regs_of(a, b), 'valu')


def permswap(n, a, b):
    return Ins(f"v_permlane{n}_swap_b32 {a}, {b}", regs_of(a, b) | {EXEC}, regs_of(a, b), 'perm')


def readfirst(sdst, v):
    return Ins(f"v_readfirstlane_b32 {sdst}, {v}", regs_of(v) | {EXEC}, regs_of(sdst), 'rdlane')


def mfma16(d, a, b, c):
    i = Ins(f"v_mfma_f32_16x16x32_bf16 {d}, {a}, {b}, {fmt(c)}", regs_of(a, b, c), regs_of(d), 'mfma')
    assert d.n == 4 and a.n == 4 and b.n == 4
    i.srcc = regs_of(c); i.srcab = regs_of(a, b); i.cost = 2
    return i


def salu(op, dst, *src, scc=True):
    t = f"{op} {fmt(dst)}" + "".join(", " + fmt(s) for s in src)
    wr = regs_of(dst)
    rd = regs_of(*src)
    nos = op in ('s_mov_b32', 's_mov_b64', 's_mul_i32', 's_movk_i32', 's_cselect_b32', 's_cselect_b64', 's_mul_hi_u32')
    if not nos: wr = wr | {SCC}
    if op.startswith('s_cselect') or op in ('s_addc_u32',): rd = rd | {SCC}
    return Ins(t, rd, wr, 'salu')


def s_cmp(op, a, b):
    return Ins(f"{op} {fmt(a)}, {fmt(b)}", regs_of(a, b), {SCC}, 'salu')


def raw(text, rd=(), wr=(), kind='salu'):
    return Ins(text, rd, wr, kind)


def ds_read(dst, addr, off=0, tr=False, tok=None):
    assert 0 <= off < 65536, off
    if tr: op = 'ds_read_b64_tr_b16'; assert dst.n == 2
    else: op = {1: 'ds_read_b32', 2: 'ds_read_b64', 4: 'ds_read_b128'}[dst.n]
    return Ins(f"{op} {dst}, {addr}" + (f" offset:{off}" if off else ""), regs_of(addr) | {EXEC}, regs_of(dst), 'ds_rd', tok)


def ds_write(addr, src, off=0, tok=None):
    assert 0 <= off < 65536, off
    op = {1: 'ds_write_b32', 2: 'ds_write_b64', 4: 'ds_write_b128'}[src.n]
    i = Ins(f"{op} {addr}, {src}" + (f" offset:{off}" if off else ""), regs_of(addr, src) | {EXEC}, set(), 'ds_wr', tok)
    if src.n >= 3: i.stdata = regs_of(src)
    return i


def _w(n): return {1: 'dword', 2: 'dwordx2', 4: 'dwordx4'}[n]


def buf_load(dst, voff, srd, soff=0, off=0, flags='', tok=None):
    assert 0 <= off < 4096
    t = f"buffer_load_{_w(dst.n)} {dst}, {voff}, {srd}, {fmt(soff)} offen" + (f" offset:{off}" if off else "") + (" " + flags if flags else "")
    return Ins(t, regs_of(voff, srd, soff) | {EXEC}, regs_of(dst), 'vm_ld', tok)


def buf_dma(voff, srd, soff=0, flags='', tok=None):
    t = f"buffer_load_dwordx4 {voff}, {srd}, {fmt(soff)} offen" + (" " + flags if flags else "") + " lds"
    return Ins(t, regs_of(voff, srd, soff) | {EXEC, M0}, set(), 'dma', tok)


def buf_store(src, voff, srd, soff=0, off=0, flags='', tok=None):
    assert 0 <= off < 4096
    t = f"buffer_store_{_w(src.n)} {src}, {voff}, {srd}, {fmt(soff)} offen" + (f" offset:{off}" if off else "") + (" " + flags if flags else "")
    i = Ins(t, regs_of(src, voff, srd, soff) | {EXEC}, set(), 'vm_st', tok)
    if src.n >= 3: i.stdata = regs_of(src)
    return i


def buf_atomic_add(src, voff, srd, soff=0, off=0, flags='sc1', tok=None):
    t = f"buffer_atomic_add {src}, {voff}, {srd}, {fmt(soff)} offen" + (f" offset:{off}" if off else "") + (" " + flags if flags else "")
    return Ins(t, regs_of(src, voff, srd, soff) | {EXEC}, set(), 'vm_st', tok)


def need(*toks):
    i = Ins('', kind='need'); i.need = list(toks); i.cost = 0
    return i


def drain_lgkm():
    i = Ins('', kind='drain_l'); i.cost = 0
    return i


def drain_vm():
    i = Ins('', kind='drain_v'); i.cost = 0
    return i


def barrier(): return Ins('s_barrier', kind='barrier')
def label(n):
    i = Ins(f"{n}:", kind='label'); i.cost = 0
    return i
def comment(t):
    i = Ins(f"; {t}", kind='comment'); i.cost = 0
    return i
def nop(n): return Ins(f"s_nop {n-1}", kind='nop')


class Block:
    def __init__(self, lines, rd=(), wr=()):
        self.lines = lines; self.rd = set(rd); self.wr = set(wr)


def block(lines, rd=(), wr=()):
    i = Ins("\n".join(lines), rd, wr, 'block')
    return i


LG = ('ds_rd', 'ds_wr')
VM = ('vm_ld', 'vm_st', 'dma')
VALU_KINDS = ('valu', 'trans', 'dpp', 'perm', 'rdlane')


def insert_waits(prog):
    out = []
    lg = []
    vm = []
    done = set()
    maxvm = 0
    def want(q, idx):
        return len(q) - 1 - idx
    for ins in prog:
        nl = nv = None
        if ins.kind == 'need':
            for t in ins.need:
                if id(t) in done: continue
                found = False
                for k, p in enumerate(lg):
                    if p.tok is t:
                        c = want(lg, k); nl = c if nl is None else min(nl, c); found = True
                for k, p in enumerate(vm):
                    if p.tok is t:
                        c = want(vm, k); nv = c if nv is None else min(nv, c); found = True
                assert found, f"token {t.name} never issued before need"
        elif ins.kind == 'drain_l':
            if lg: nl = 0
        elif ins.kind == 'drain_v':
            if vm: nv = 0
        else:
            touched = ins.rd | ins.wr
            for k, p in enumerate(lg):
                if p.wr & touched:
                    c = want(lg, k); nl = c if nl is None else min(nl, c)
            for k, p in enumerate(vm):
                if p.wr & touched:
                    c = want(vm, k); nv = c if nv is None else min(nv, c)
        if nl is not None or nv is not None:
            parts = []
            if nv is not None:
                nv = min(nv, 63); parts.append(f"vmcnt({nv})")
                k = len(vm) - nv
                for p in vm[:max(k, 0)]:
                    if p.tok is not None and not any(q.tok is p.tok for q in vm[k:]): done.add(id(p.tok))
                vm = vm[max(k, 0):]
            if nl is not None:
                nl = min(nl, 15); parts.append(f"lgkmcnt({nl})")
                k = len(lg) - nl
                for p in lg[:max(k, 0)]:
                    if p.tok is not None and not any(q.tok is p.tok for q in lg[k:]): done.add(id(p.tok))
                lg = lg[max(k, 0):]
            out.append(Ins("s_waitcnt " + " ".join(parts), kind='wait'))
        if ins.kind in ('need', 'drain_l', 'drain_v', 'touch'):
            continue
        out.append(ins)
        if ins.kind in LG: lg.append(ins)
        if ins.kind in VM:
            vm.append(ins); maxvm = max(maxvm, len(vm))
            assert len(vm) <= 63, "too many VMEM ops in flight (static model)"
    return out, maxvm


def isv(regs): return {r for r in regs if r[0] == 'v'}
def iss(regs): return {r for r in regs if r[0] == 's' or r == VCC}


def required_gap(p, c):
    g = 0
    pk, ck = p.kind, c.kind
    pv = pk in VALU_KINDS
    cv = ck in VALU_KINDS
    if pv and ck == 'mfma' and (isv(p.wr) & c.rd): g = max(g, 2)
    if pk == 'mfma':
        d = p.wr
        if ck == 'mfma':
            if d & c.srcab: g = max(g, 8)
            if d & c.srcc and c.srcc != d: g = max(g, 6)
            if d & c.wr and not (c.srcc == d): g = max(g, 6)
        else:
            if d & (c.rd | c.wr): g = max(g, 8)
        if cv and (p.srcc & c.wr): g = max(g, 3)
    if pk == 'trans' and cv and ck != 'trans' and (p.wr & c.rd): g = max(g, 1)
    if pk == 'trans' and ck == 'trans' and (p.wr & c.rd): g = max(g, 1)
    if pv and ck in ('perm', 'dpp') and (isv(p.wr) & c.rd): g = max(g, 2)
    if pv and ck == 'rdlane' and (isv(p.wr) & c.rd): g = max(g, 1)
    if pv and iss(p.wr):
        if cv and (iss(p.wr) & c.rd): g = max(g, 2)
        if ck in VM and (iss(p.wr) & c.rd): g = max(g, 5)
        if ck in ('salu', 'block') and (iss(p.wr) & c.rd): g = max(g, 2)
    if pk == 'salu' and M0 in p.wr and ck == 'dma': g = max(g, 1)
    if p.stdata and (p.stdata & c.wr): g = max(g, 2 if cv else 1)
    if pk == 'salu' and EXEC in p.wr and ck in ('perm', 'dpp', 'mfma'): g = max(g, 2)
    return g


def states(i):
    if i.kind in ('label', 'comment'): return 0
    if i.kind == 'nop': return int(i.text.split()[1]) + 1
    return 1


def insert_nops(prog):
    out = []
    W = 12
    for ins in prog:
        if ins.kind not in ('label', 'comment'):
            dist = 0; pad = 0; seen = 0
            for p in reversed(out):
                if p.kind in ('label', 'comment'): continue
                g = required_gap(p, ins)
                if g > dist: pad = max(pad, g - dist)
                dist += states(p)
                if dist >= W: break
            if pad > 0: out.append(nop(pad))
        out.append(ins)
    return out


def finalize(prog):
    p, maxvm = insert_waits(prog)
    p = insert_nops(p)
    return p, maxvm


def text(prog):
    return "\n".join(i.text for i in prog if i.text) + "\n"


def stats(prog):
    from collections import Counter
    return Counter(i.kind for i in prog)
```

```python
import sys, math
from asmlib import *

KNAME = "gated_mix__linear_kernel_hedgehog__glu_gated_swiglu__prompt_kernel"

class Cfg:
    stamps = False
    stopafter_g1 = False
    arr1 = 0
    arr2 = 0
    order = ['h0', 'h1', 'h2', 'hh', 'o']
    h_span = 30
    flag_delay = 20
    prioA = 1
    b_quota_early = 66
    b_quota_late = 46
    lead = 4
    poll_lead = 2
    kv_flag = 11
    kv_check = 14
cfg = Cfg()

CHO_OFF = 0x0
CKV_OFF = 0x8000
KVP_OFF = 0x10000
H_OFF = 0x200000
STAMP_OFF = 0xC00000
WS_BYTES = 268435456
KVP_STRIDE = 4608
K = 1024
P_OFF = 0; P_SZ = 16*K
MISC = 64*K
HAND = MISC; KVF = MISC + 8*K; GATE = MISC + 12*K; ZERO = MISC + 13*K; WPHI = MISC + 14*K; ZP = MISC + 15*K
GBUF = WPHI
RING = 80*K
def Qoff(slot): return ((slot + 3) % 5) * 16 * K
LDS_BYTES = 160*K
LOG2E = 1.4426950408889634
def f2u(x):
    import struct
    return struct.unpack('<I', struct.pack('<f', x))[0]

sW = S(4); sM1 = S(5); sN = S(6); sM2 = S(7); sN2 = S(8); sT = S(9); sO = [S(10), S(11)]; sT3 = S(3)
rX = S(12, 4); rWQ = S(16, 4); rW1 = S(20, 4); rW3 = S(24, 4); rW2 = S(28, 4); rWO = S(32, 4)
rPH = S(36, 4); rGW = S(40, 4); rWS = S(44, 4); rOUT = S(48, 4); rDBG = S(52, 4)
sL = S(56); sNL = S(57)
sStat = S(58); sSpin = S(59)
sTS = S(60, 2)
STAMP0 = 76

FIELD = {'h0': 0, 'h1': 6, 'o': 12, 'h2': 18, 'hh': 24}
def seg_pos():
    pos = {}; p = 0
    for s in cfg.order:
        pos[s] = p; p += 2 if s == 'hh' else 4
    assert p == 18
    return pos

class Stamper:
    def __init__(self): self.names = []
    def __call__(self, name):
        if not cfg.stamps: return []
        k = len(self.names); assert STAMP0 + k < 102, "too many stamps"
        self.names.append(name)
        return [raw(f"s_memtime {sTS}", wr=sTS.regs()), raw("s_waitcnt lgkmcnt(0)", kind='wait'), drain_lgkm(),
                salu('s_mov_b32', S(STAMP0 + k), sTS[0])]
    def flush(self, vtmp, vaddr, slot):
        if not cfg.stamps: return []
        L = [valu('v_mov_b32', vtmp, 0)]
        for k in range(len(self.names)):
            L.append(raw(f"v_writelane_b32 {vtmp}, s{STAMP0+k}, {k}", rd={('s', STAMP0+k), ('v', vtmp.i)}, wr={('v', vtmp.i)}, kind='valu'))
        L += [valu('v_mbcnt_lo_u32_b32', vaddr, -1, 0), valu('v_mbcnt_hi_u32_b32', vaddr, -1, vaddr), valu('v_lshlrev_b32', vaddr, 2, vaddr)]
        L += [salu('s_lshl_b32', sT, S(2), 3), salu('s_add_u32', sT, sT, sW), salu('s_add_u32', sT, sT, slot),
              salu('s_lshl_b32', sT, sT, 8), salu('s_add_u32', sT, sT, STAMP_OFF),
              buf_store(vtmp, vaddr, rWS, sT), drain_vm()]
        return L

def spin_until(name, vdst, vaddr, srd, soff, sdst, cond_lines):
    L = cond_lines + [f"s_cbranch_scc1 L_{name}_ok", f"s_mov_b32 {sSpin}, 0x40000", f"L_{name}_spin:",
         f"buffer_load_dword {vdst}, {vaddr}, {srd}, {fmt(soff)} offen sc1", "s_waitcnt vmcnt(0)",
         f"v_readfirstlane_b32 {sdst}, {vdst}", f"s_sub_u32 {sSpin}, {sSpin}, 1", f"s_cmp_eq_u32 {sSpin}, 0",
         f"s_cbranch_scc1 L_{name}_ok"] + cond_lines + [f"s_cbranch_scc0 L_{name}_spin", f"L_{name}_ok:"]
    return block(L, rd=regs_of(vdst, vaddr, srd, soff, sdst), wr=regs_of(vdst, sdst, sSpin) | {SCC})

def sigma(dst, a, tmp):
    return [valu('v_lshlrev_b32', tmp, 1, a), valu('v_lshrrev_b32', dst, tmp, sT3), valu('v_and_b32', dst, 3, dst)]

def gen_common():
    L = []
    L.append(s_cmp('s_cmp_ge_u32', S(2), 256))
    L.append(raw("s_cbranch_scc1 L_end", rd={SCC}))
    for r, off in ((rX, 0), (rWQ, 8), (rPH, 16), (rWO, 24), (rW1, 40), (rW3, 48), (rW2, 56), (rGW, 64), (rOUT, 72), (rDBG, 80), (rWS, 88)):
        L.append(raw(f"s_load_dwordx2 {r.sub(0,2)}, s[0:1], {off}", wr=r.sub(0, 2).regs()))
    L.append(readfirst(sW, V(0)))
    for r, sz in ((rX, 2048*512*2), (rWQ, 512*1536*2), (rPH, 32*16*16*2), (rWO, 512*512*2), (rW1, 512*1792*2), (rW3, 512*1792*2),
                  (rW2, 1792*512*2), (rGW, 1024), (rOUT, 2048*512*2), (rDBG, 256), (rWS, WS_BYTES)):
        L.append(salu('s_mov_b32', r[2], sz)); L.append(salu('s_mov_b32', r[3], 0x20000))
    xcd = sO[0]; idx = sO[1]
    L += [salu('s_and_b32', xcd, S(2), 7), salu('s_lshr_b32', idx, S(2), 3)]
    if cfg.arr1 == 0:
        L += [salu('s_and_b32', sM1, xcd, 1), salu('s_lshl_b32', sM1, sM1, 3), salu('s_and_b32', sT, idx, 7), salu('s_add_u32', sM1, sM1, sT),
              salu('s_lshr_b32', sN, xcd, 1), salu('s_lshl_b32', sN, sN, 2), salu('s_lshr_b32', sT, idx, 3), salu('s_add_u32', sN, sN, sT)]
    else:
        L += [salu('s_and_b32', sM1, xcd, 3), salu('s_lshl_b32', sM1, sM1, 2), salu('s_and_b32', sT, idx, 3), salu('s_add_u32', sM1, sM1, sT),
              salu('s_lshr_b32', sN, xcd, 2), salu('s_lshl_b32', sN, sN, 3), salu('s_lshr_b32', sT, idx, 2), salu('s_add_u32', sN, sN, sT)]
    if cfg.arr2 == 0:
        L += [salu('s_lshl_b32', sM2, xcd, 2), salu('s_lshr_b32', sT, idx, 3), salu('s_add_u32', sM2, sM2, sT), salu('s_and_b32', sN2, idx, 7)]
    else:
        L += [salu('s_lshr_b32', sM2, xcd, 1), salu('s_lshl_b32', sM2, sM2, 3), salu('s_lshr_b32', sT, idx, 2), salu('s_add_u32', sM2, sM2, sT),
              salu('s_and_b32', sN2, xcd, 1), salu('s_lshl_b32', sN2, sN2, 2), salu('s_and_b32', sT, idx, 3), salu('s_add_u32', sN2, sN2, sT)]
    L += [salu('s_mov_b32', sL, f2u(LOG2E)), salu('s_mov_b32', sNL, f2u(-LOG2E)), salu('s_mov_b32', sT3, 0x78)]
    L += [salu('s_lshr_b32', sT, sW, 6), salu('s_and_b32', sW, sT, 3), valu('v_and_b32', V(0), 63, V(0))]
    L += [raw("s_waitcnt lgkmcnt(0)", kind='wait')]
    L += [s_cmp('s_cmp_ge_u32', sT, 4), raw("s_cbranch_scc1 L_B", rd={SCC})]
    return L

def h_base(dst, m2p_s, tmp):
    return [salu('s_mul_i32', dst, m2p_s, 72), salu('s_lshr_b32', tmp, sN, 2), salu('s_mul_i32', tmp, tmp, 18), salu('s_add_u32', dst, dst, tmp),
            salu('s_lshl_b32', dst, dst, 12), salu('s_add_u32', dst, dst, H_OFF)]

def producer_addrs(sH, sHH, sC):
    pos = seg_pos(); L = []
    L += [salu('s_lshr_b32', sT, sW, 1), salu('s_lshl_b32', sO[0], sM1, 1), salu('s_add_u32', sO[0], sO[0], sT)]
    L += h_base(sH, sO[0], sO[1])
    L += [salu('s_and_b32', sO[1], sN, 3), salu('s_lshr_b32', sO[0], sO[1], 1), salu('s_add_u32', sO[0], sO[0], pos['hh']), salu('s_lshl_b32', sO[0], sO[0], 12),
          salu('s_add_u32', sHH, sH, sO[0]), salu('s_and_b32', sO[0], sN, 1), salu('s_lshl_b32', sO[0], sO[0], 11), salu('s_add_u32', sHH, sHH, sO[0]),
          salu('s_and_b32', sO[0], sW, 1), salu('s_lshl_b32', sO[0], sO[0], 10), salu('s_add_u32', sHH, sHH, sO[0])]
    L += [salu('s_lshl_b32', sO[1], sO[1], 12), salu('s_add_u32', sH, sH, sO[1]), salu('s_lshl_b32', sO[0], sO[0], 1), salu('s_add_u32', sH, sH, sO[0])]
    L += [salu('s_lshl_b32', sC, sM1, 2), salu('s_lshr_b32', sO[0], sN, 2), salu('s_add_u32', sC, sC, sO[0]), salu('s_lshl_b32', sC, sC, 1),
          salu('s_add_u32', sC, sC, sT), salu('s_lshl_b32', sC, sC, 8), salu('s_add_u32', sC, sC, CHO_OFF)]
    return L

def lane0_offset(vdst, vlane):
    return [v_cmp('v_cmp_eq_u32', vcc, 0, vlane), valu('v_mov_b32', vdst, 0x7ffffff0), v_cndmask(vdst, vdst, 0, vcc)]

def pack_gaps(mfmas, reads, q, quota, last_wait=True):
    take = []; u = 0
    while q and u + q[0].cost <= quota:
        i = q.pop(0); take.append(i); u += i.cost
    cc = lambda i: 0 if i.kind == 'mfma' else i.cost
    base = [2, 2, 2, 1 if last_wait else 2]
    tot = sum(cc(i) for i in take) + len(reads)
    ext = 0
    while sum(base) < tot:
        base[ext % 4] += 2; ext += 1
    out = []; reads = list(reads)
    for g in range(4):
        out.append(mfmas[g])
        c = base[g]
        rem_after = sum(base[g+1:])
        while c > 0 and (take or reads):
            if take and cc(take[0]) <= c and (c - cc(take[0]) + rem_after) >= len(reads):
                i = take.pop(0); out.append(i); c -= cc(i)
            elif reads:
                out.append(reads.pop(0)); c -= 1
            else:
                break
    out += reads + take
    return out

def genA():
    st = Stamper()
    vL = V(0); vL16 = V(1); vHand = V(2); vT = [[V(3), V(4)], [V(5), V(6)]]; vCnt = V(7)
    vXg = V(8); vXr = V(9); vXa = V(10); vC = [V(8), V(9)]; vGa = V(10); vD = V(11)
    tmp = [V(12 + i) for i in range(4)] + [V(16 + i) for i in range(4)]
    gacc = [V(16, 4), V(20, 4)]; gfr = [V(24, 4), V(28, 4)]
    Wr = lambda G, fg: V(32 + (G % 4) * 8 + fg * 4, 4)
    ACC = lambda b, fg, tg: V(64 + (b % 4) * 16 + (fg * 2 + tg) * 4, 4)
    X = lambda Sx, tg: V(128 + (Sx * 2 + tg) * 4, 4)
    sXp = [S(62), S(63), S(64), S(65)]; sXb = S(66); sH = S(67); sHH = S(68); sC = S(69); sG = S(70)
    pos = seg_pos()
    L = [label('L_A')]
    L += st('A_start')
    t0, t1, t2 = V(12), V(13), V(14)
    L += [valu('v_lshrrev_b32', t0, 4, vL)] + sigma(t1, t0, t2)
    L += [valu('v_and_b32', t0, 3, vL), valu('v_xor_b32', t0, t0, t1), valu('v_lshlrev_b32', t0, 4, t0),
          valu('v_lshrrev_b32', t1, 2, vL), valu('v_lshlrev_b32', t1, 10, t1), valu('v_add_u32', vXg, t0, t1)]
    L += [salu('s_lshl_b32', sXb, sM1, 7), salu('s_lshl_b32', sT, sW, 5), salu('s_add_u32', sXb, sXb, sT), salu('s_lshl_b32', sXb, sXb, 10)]
    L += [salu('s_lshl_b32', sT, sW, 13), salu('s_add_u32', sXp[0], sT, 80*K), salu('s_add_u32', sXp[2], sT, 0), salu('s_add_u32', sXp[3], sT, 32*K),
          salu('s_add_u32', sXp[1], sT, 112*K), salu('s_add_u32', sO[0], sT, 48*K), s_cmp('s_cmp_ge_u32', sW, 2), salu('s_cselect_b32', sXp[1], sO[0], sXp[1])]
    xtok = [Tok(f"x{p}") for p in range(4)]
    for Sx in range(16):
        for tg in range(2):
            L += [salu('s_add_u32', m0, sXp[Sx >> 2], (Sx & 3) * 2048 + tg * 1024),
                  salu('s_add_u32', sO[tg], sXb, tg * 16384 + Sx * 64),
                  buf_dma(vXg, rX, sO[tg], tok=xtok[Sx >> 2])]
    L += [valu('v_lshlrev_b32', vL16, 4, vL)]
    L += [valu('v_lshrrev_b32', t0, 2, vL), valu('v_and_b32', t0, 3, t0)] + sigma(t1, t0, t2)
    L += [valu('v_lshrrev_b32', t0, 4, vL), valu('v_xor_b32', t0, t0, t1), valu('v_lshlrev_b32', t0, 4, t0),
          valu('v_and_b32', t1, 15, vL), valu('v_lshlrev_b32', t1, 6, t1), valu('v_add_u32', vXr, t0, t1)]
    L += [valu('v_lshrrev_b32', t0, 5, vL), valu('v_lshlrev_b32', t0, 10, t0),
          valu('v_bfe_u32', t1, vL, 4, 1), valu('v_mul_u32_u24', t2, 544, t1), valu('v_add_u32', t0, t0, t2),
          valu('v_bfe_u32', t1, vL, 2, 2), valu('v_lshlrev_b32', t1, 6, t1), valu('v_add_u32', t0, t0, t1),
          valu('v_and_b32', t1, 3, vL), valu('v_lshlrev_b32', t1, 3, t1), valu('v_add_u32', t0, t0, t1),
          valu('v_add_u32', vT[0][0], RING, t0), valu('v_xor_b32', vT[0][1], 32, vT[0][0]),
          valu('v_add_u32', vT[1][0], 64*K, vT[0][0]), valu('v_add_u32', vT[1][1], 64*K, vT[0][1])]
    L += [salu('s_lshl_b32', sT, sW, 11), salu('s_add_u32', sT, sT, HAND), valu('v_add_u32', vHand, sT, vL16)]
    L += lane0_offset(vCnt, vL)
    L += producer_addrs(sH, sHH, sC)
    L += [salu('s_lshl_b32', sG, sW, 7), salu('s_add_u32', sG, sG, GBUF)]
    L += [raw(f"s_setprio {cfg.prioA}")]

    def xreads(p):
        R = [valu('v_add_u32', vXa, sXp[p], vXr), need(xtok[p])]
        for Sx in range(4*p, 4*p+4):
            for tg in range(2):
                R.append(ds_read(X(Sx, tg), vXa, (Sx & 3) * 2048 + tg * 1024))
        return R

    half_setup_done = [False]
    def wreads(G):
        b = G >> 4; Sx = G & 15; slot = G >> 3; Sp_ = G & 7
        q = Qoff(slot); R = []
        if b == 9:
            assert q < 64*K
            for fg in range(2):
                for j in range(2):
                    R.append(ds_read(Wr(G, fg).sub(2*j, 2), vT[1][j], q + Sp_*2048 + fg*1024, tr=True))
        else:
            hi = 1 if q >= 64*K else 0
            for fg in range(2):
                for j in range(2):
                    R.append(ds_read(Wr(G, fg).sub(2*j, 2), vT[hi][fg], q - hi*64*K + Sp_*2048 + j*256, tr=True))
        return R

    def mf(G):
        b = G >> 4; Sx = G & 15; M = []
        for fg in range(2):
            for tg in range(2):
                d = ACC(b, fg, tg); c = 0 if Sx == 0 else d
                M.append(mfma16(d, X(Sx, tg), Wr(G, fg), c) if b == 1 else mfma16(d, Wr(G, fg), X(Sx, tg), c))
        return M

    def cvt(dst, a, b): return valu('v_cvt_pk_bf16_f32', dst, a, b)

    def handoff(b, tok):
        R = []
        for u in range(2):
            if b == 1: a0, a1 = ACC(b, u, 0), ACC(b, u, 1)
            else: a0, a1 = ACC(b, 0, u), ACC(b, 1, u)
            R += [cvt(a0[0], a0[0], a0[1]), cvt(a0[1], a0[2], a0[3]), cvt(a0[2], a1[0], a1[1]), cvt(a0[3], a1[2], a1[3]),
                  ds_write(vHand, a0, u*1024, tok=tok)]
        return R

    def h_tile(Gt, Ut, c, ts, d0, d1):
        R = []
        for r in range(4): R.append(valu('v_mul_f32', ts[r], sNL, Gt[r]))
        for r in range(4):
            R.append(valu('v_exp_f32', ts[r], ts[r])); R.append(valu('v_mul_f32', Gt[r], Gt[r], Ut[r]))
        for r in range(4): R.append(valu('v_fma_f32', ts[r], ts[r], c, c))
        for r in range(4): R.append(valu('v_rcp_f32', ts[r], ts[r]))
        for r in range(4): R.append(valu('v_mul_f32', Gt[r], Gt[r], ts[r]))
        R += [cvt(d0, Gt[0], Gt[1]), cvt(d1, Gt[2], Gt[3])]
        return R

    def h_epi(bg, seg, tok):
        R = []
        for tg in range(2):
            fr = ACC(bg + 1, 0, tg)
            for fg in range(2):
                R += h_tile(ACC(bg, fg, tg), ACC(bg + 1, fg, tg), vC[tg], tmp[4*fg:4*fg+4], fr[2*fg], fr[2*fg+1])
            R += [salu('s_add_u32', sO[tg], sH, pos[seg]*4096), buf_store(fr, vL16, rWS, sO[tg], tg*1024, 'sc1', tok=tok)]
        return R

    def flag(seg, tok):
        return [need(tok), valu('v_mov_b32', vD, 1 << FIELD[seg]), buf_atomic_add(vD, vCnt, rWS, sC)]

    tk, tv, tq, tg_ = Tok('hk'), Tok('hv'), Tok('hq'), Tok('hg')
    th = {s: Tok(s) for s in ('h0', 'h1', 'h2', 'hh')}
    tinit = Tok('init')
    add = {}; quota = {}
    def sched(G, lst, span):
        add.setdefault(G, []).extend(lst)
        u = sum(i.cost for i in lst); r = u / span
        for g in range(G, G + span): quota[g] = quota.get(g, 0) + r
    sched(16, handoff(0, tk), 4)
    sched(32, handoff(1, tv), 4)
    sched(48, handoff(2, tq), 4)
    gs = [valu('v_lshrrev_b32', tmp[0], 4, vL), valu('v_lshlrev_b32', tmp[0], 4, tmp[0]), valu('v_add_u32', tmp[0], GATE, tmp[0]),
          valu('v_and_b32', tmp[1], 3, vL), v_cmp('v_cmp_eq_u32', vcc, 0, tmp[1]), valu('v_mov_b32', vGa, ZERO), v_cndmask(vGa, vGa, tmp[0], vcc)]
    sched(20, gs, 3)
    GG0 = 24
    gl = []
    for Sx in range(16):
        gl.append([ds_read(gfr[Sx & 1], vGa, Sx*64)])
    gm = [[mfma16(gacc[tg], gfr[Sx & 1], X(Sx, tg), 0 if Sx == 0 else gacc[tg]) for tg in range(2)] for Sx in range(16)]
    for Sx in range(16):
        sched(GG0 + 2*Sx, gl[Sx], 1)
        sched(GG0 + 2*Sx + 2, gm[Sx], 2 if Sx < 15 else 1)
    ge = []
    for tg in range(2):
        a, b2 = tmp[2*tg], tmp[2*tg+1]
        ge += [valu('v_mul_f32', a, sL, gacc[tg][0]), valu('v_mul_f32', b2, sNL, gacc[tg][0]), valu('v_exp_f32', a, a), valu('v_exp_f32', b2, b2),
               valu('v_add_f32', a, 1.0, a), valu('v_add_f32', b2, 1.0, b2), valu('v_min_f32', vC[tg], f2u(1e38), a), valu('v_rcp_f32', b2, b2)]
    ge += [valu('v_and_b32', vD, 15, vL), valu('v_lshlrev_b32', vD, 2, vD), valu('v_add_u32', vD, sG, vD),
           ds_write(vD, tmp[1], 0, tok=tg_), ds_write(vD, tmp[3], 64, tok=tg_)]
    sched(60, ge, 8)
    sched(64, [buf_load(vD, vCnt, rDBG, 0, 0, 'sc1', tok=tinit)], 1)
    sched(76, [readfirst(sStat, vD), spin_until('Ainit', vD, vCnt, rDBG, 0, sStat, [f"s_cmp_lg_u32 {sStat}, 0"])], 1)
    hs = cfg.h_span
    sched(80, h_epi(3, 'h0', th['h0']), hs)
    sched(112, h_epi(5, 'h1', th['h1']), hs)
    front = {}
    front[min(80 + hs + cfg.flag_delay, 159)] = flag('h0', th['h0'])
    g1 = 112 + hs + cfg.flag_delay
    if g1 < 160: front[g1] = flag('h1', th['h1'])
    ta, tb = V(24), V(25)
    hb2 = [valu('v_lshrrev_b32', ta, 4, vL), valu('v_lshlrev_b32', ta, 8, ta),
           valu('v_bfe_u32', tb, vL, 2, 2), valu('v_lshlrev_b32', tb, 5, tb), valu('v_add_u32', ta, ta, tb),
           valu('v_and_b32', tb, 3, vL), valu('v_lshlrev_b32', tb, 3, tb), valu('v_add_u32', ta, ta, tb),
           valu('v_bfe_u32', tb, vL, 4, 1), valu('v_lshlrev_b32', tb, 7, tb), valu('v_add_u32', ta, ta, tb),
           valu('v_add_u32', ta, RING, ta)]
    sched(68, hb2, 6)
    late = {136: [valu('v_mov_b32', vT[1][0], ta), valu('v_xor_b32', vT[1][1], 128, ta)]}
    sched(144, h_epi(7, 'h2', th['h2']), 16)
    must_empty = {112: 'h0', 144: 'h1'}
    need_at_bar = {3: [tk], 5: [tv], 7: [tq], 10: [tg_]}

    L += xreads(0) + [drain_lgkm(), barrier()]
    for G in range(3): L += wreads(G)
    q = []; budget = 0.0
    flagged_h1 = False
    for G in range(160):
        if G in (4, 8, 12): L += xreads(G // 4)
        if G % 8 == 5:
            s = (G + 3) // 8
            if s in (1, 2): L.append(drain_lgkm())
            for t in need_at_bar.get(s, []):
                assert not any(i.tok is t for i in q), ("token still queued at barrier", s, t.name)
                L.append(need(t))
            L.append(barrier())
            L.append(comment(f"A bar_{s}"))
        if G in must_empty:
            assert not q, (G, must_empty[G], len(q))
        q += add.get(G, [])
        if G in late: L += late[G]
        if G in front:
            q = front[G] + q; budget += 2
        budget += quota.get(G, 0)
        qt = int(budget + 1e-6)
        before = sum(i.cost for i in q)
        reads = wreads(G + 3) if G + 3 < 160 else []
        M = mf(G)
        L.append(touch(Wr(G, 0), Wr(G, 1)))
        L += pack_gaps(M, reads, q, qt)
        used = before - sum(i.cost for i in q)
        budget = max(budget - used, 0) if q else 0.0
    L.append(barrier()); L.append(comment("A bar_21"))
    if g1 >= 160: L += flag('h1', th['h1'])
    L += q
    fr = ACC(9, 1, 0)
    R0 = h_tile(ACC(9, 0, 0), ACC(9, 1, 0), vC[0], tmp[0:4], V(24), V(25))
    R1 = h_tile(ACC(9, 0, 1), ACC(9, 1, 1), vC[1], tmp[4:8], V(26), V(27))
    for a, b2 in zip(R0, R1): L += [a, b2]
    L += [buf_store(V(24, 4), vL16, rWS, sHH, 0, 'sc1', tok=th['hh'])]
    L += flag('h2', th['h2'])
    L += flag('hh', th['hh'])
    L += st('A_end')
    L += st.flush(V(12), V(13), 0)
    L += [drain_vm(), raw("s_endpgm", kind='branch')]
    return L, st

def touch(*rs):
    i = Ins('', rd=regs_of(*rs), kind='touch'); i.cost = 0
    return i

def genB():
    st = Stamper()
    vL = V(0); vL16 = V(1); vWq = V(2); vW = V(3); vW2 = V(4); vU0 = V(5); vCnt = V(6); vHand = V(7)
    vA = [V(8), V(9), V(10), V(11)]; vP = V(12); vD = V(13); vWh = V(14); vM = V(15)
    PHI = V(16, 6); IDN = V(22, 6); ONE = V(28, 4)
    FR = [V(32, 4), V(36, 4)]
    Pt = lambda u: V(40 + 4*u, 4)
    Em = lambda u: V(56 + 4*u, 4)
    mx = [V(72 + u) for u in range(4)]; nm = [V(76 + u) for u in range(4)]; tp = [V(80 + u) for u in range(4)]
    Sp = [V(84 + u) for u in range(4)]; Sm = [V(88 + u) for u in range(4)]
    PF = lambda u: V(92 + 4*u, 4)
    RES = lambda i, cg: V(128 + 16*i + 4*cg, 4)
    sPw = S(62); sW1w3 = S(63); sW1wq = S(64); sH = S(65); sHH = S(66); sC = S(67); sHc = S(68); sCp = S(69)
    sW2b = S(70); sKV = S(71); sCk = S(72); sWh = S(73); sWob = S(74); sRing = S(75)
    pos = seg_pos()
    L = [label('L_B')]
    L += st('B_start')
    t0, t1, t2, t3 = V(16), V(17), V(18), V(19)
    cvt = lambda dst, a, b: valu('v_cvt_pk_bf16_f32', dst, a, b)
    L += [valu('v_lshrrev_b32', t0, 5, vL), valu('v_lshlrev_b32', t0, 1, t0), valu('v_and_b32', t1, 3, vL), valu('v_xor_b32', t0, t0, t1),
          valu('v_lshlrev_b32', t0, 4, t0), valu('v_lshrrev_b32', t1, 2, vL),
          valu('v_mul_u32_u24', t2, 3072, t1), valu('v_add_u32', vWq, t0, t2),
          valu('v_mul_u32_u24', t2, 3584, t1), valu('v_add_u32', vW, t0, t2)]
    L += [salu('s_mul_i32', sW1wq, sW, 64*3072), salu('s_lshl_b32', sT, sN, 6), salu('s_add_u32', sW1wq, sW1wq, sT),
          salu('s_mul_i32', sW1w3, sW, 64*3584), salu('s_lshl_b32', sT, sN, 5), salu('s_add_u32', sWh, sW1w3, sT), salu('s_add_u32', sWh, sWh, 3072),
          salu('s_mul_i32', sT, sN, 192), salu('s_add_u32', sW1w3, sW1w3, sT),
          salu('s_lshl_b32', sRing, sW, 12), salu('s_add_u32', sRing, sRing, RING)]
    stok = [Tok(f"slot{s}") for s in range(20)]
    par = [0]
    def dma(voff, srd, sbase, soff, sm0, m0off, tok):
        o = sO[par[0]]; par[0] ^= 1
        return [salu('s_add_u32', m0, sm0, m0off), salu('s_add_u32', o, sbase, soff), buf_dma(voff, srd, o, tok=tok)]
    def slot_dma(s):
        b = s >> 1; hf = s & 1; R = []
        for i in range(4):
            if b < 3:
                col = {0: 512, 1: 1024, 2: 0}[b]
                R += dma(vWq, rWQ, sW1wq, (256*hf + 16*i)*3072 + col*2, sRing, Qoff(s) + i*1024, stok[s])
            elif b < 9:
                ib = (b - 3) >> 1; srd = rW1 if (b - 3) % 2 == 0 else rW3
                R += dma(vW, srd, sW1w3, (256*hf + 16*i)*3584 + ib*64, sRing, Qoff(s) + i*1024, stok[s])
            else:
                R += dma(vWh, rW1 if (i & 1) == 0 else rW3, sWh, (256*hf + 32*(i >> 1))*3584, sRing, Qoff(s) + i*1024, stok[s])
        return R
    tini = Tok('ini')
    L += [salu('s_or_b32', sT, S(2), sW), s_cmp('s_cmp_eq_u32', sT, 0), salu('s_cselect_b32', sT, 0, 0x40000000),
          valu('v_lshlrev_b32', vD, 8, vL), valu('v_add_u32', vD, sT, vD), valu('v_mov_b32', vP, 0)]
    for k in range(3):
        L += [salu('s_mov_b32', sO[k & 1], k*16384), buf_store(vP, vD, rWS, sO[k & 1], 0, 'sc1', tok=tini)]
    L += slot_dma(0) + slot_dma(1)
    L += lane0_offset(vCnt, vL)
    L += [valu('v_add_u32', vD, sT, vCnt), valu('v_mov_b32', vP, 1), need(tini), buf_store(vP, vD, rDBG, 0, 0, 'sc1')]
    L += [valu('v_lshlrev_b32', vL16, 4, vL)]
    L += [valu('v_bfe_u32', t0, vL, 4, 1), valu('v_lshlrev_b32', t0, 2, t0), valu('v_lshrrev_b32', t1, 1, vL), valu('v_xor_b32', t0, t0, t1),
          valu('v_mul_u32_u24', t0, 3584, t0), valu('v_and_b32', t1, 1, vL), valu('v_lshlrev_b32', t1, 4, t1), valu('v_add_u32', vWh, t0, t1)]
    L += [valu('v_lshrrev_b32', t0, 4, vL), valu('v_lshlrev_b32', t0, 1, t0), valu('v_and_b32', t1, 7, vL), valu('v_xor_b32', t0, t0, t1),
          valu('v_lshlrev_b32', t0, 4, t0), valu('v_lshrrev_b32', t1, 3, vL), valu('v_lshlrev_b32', t1, 10, t1), valu('v_add_u32', vW2, t0, t1)]
    L += [valu('v_lshrrev_b32', t0, 5, vL), valu('v_lshlrev_b32', t0, 10, t0),
          valu('v_bfe_u32', t1, vL, 4, 1), valu('v_mul_u32_u24', t1, 576, t1), valu('v_add_u32', t0, t0, t1),
          valu('v_bfe_u32', t1, vL, 2, 2), valu('v_lshlrev_b32', t1, 7, t1), valu('v_add_u32', t0, t0, t1),
          valu('v_bfe_u32', t1, vL, 3, 1), valu('v_lshlrev_b32', t1, 5, t1), valu('v_add_u32', t0, t0, t1),
          valu('v_and_b32', t1, 3, vL), valu('v_lshlrev_b32', t1, 3, t1), valu('v_add_u32', vU0, t0, t1)]
    L += [salu('s_lshl_b32', sPw, sW, 14), salu('s_lshl_b32', sT, sW, 11), salu('s_add_u32', sT, sT, HAND), valu('v_add_u32', vHand, sT, vL16)]
    L += [valu('v_lshrrev_b32', t0, 4, vL), valu('v_lshlrev_b32', t0, 2, t0), valu('v_and_b32', t1, 15, vL), valu('v_sub_u32', t0, t1, t0),
          valu('v_mov_b32', t2, 0x3f80), valu('v_mov_b32', t3, 0x3f800000)]
    for d in range(2):
        L += [valu('v_mov_b32', IDN[d], 0), v_cmp('v_cmp_eq_u32', vcc, 2*d, t0), v_cndmask(IDN[d], IDN[d], t2, vcc),
              v_cmp('v_cmp_eq_u32', vcc, 2*d + 1, t0), v_cndmask(IDN[d], IDN[d], t3, vcc), valu('v_mov_b32', IDN[4 + d], IDN[d]), valu('v_mov_b32', IDN[2 + d], 0)]
    for d in range(4): L.append(valu('v_mov_b32', ONE[d], 0x3f803f80))
    L += producer_addrs(sH, sHH, sC)
    L += [salu('s_mul_i32', sHc, sM2, 72), salu('s_mul_i32', sT, sW, 18), salu('s_add_u32', sHc, sHc, sT), salu('s_lshl_b32', sHc, sHc, 12), salu('s_add_u32', sHc, sHc, H_OFF),
          salu('s_lshr_b32', sCp, sM2, 1), salu('s_lshl_b32', sCp, sCp, 2), salu('s_add_u32', sCp, sCp, sW), salu('s_lshl_b32', sCp, sCp, 1),
          salu('s_and_b32', sT, sM2, 1), salu('s_add_u32', sCp, sCp, sT), salu('s_lshl_b32', sCp, sCp, 8), salu('s_add_u32', sCp, sCp, CHO_OFF),
          salu('s_mul_i32', sW2b, sW, 384*1024), salu('s_lshl_b32', sT, sN2, 7), salu('s_add_u32', sW2b, sW2b, sT),
          salu('s_lshl_b32', sWob, sW, 17), salu('s_add_u32', sWob, sWob, sT),
          salu('s_mul_i32', sKV, sN, 16*KVP_STRIDE), salu('s_lshl_b32', sT, sW, 10), salu('s_add_u32', sKV, sKV, sT), salu('s_add_u32', sKV, sKV, KVP_OFF),
          salu('s_lshl_b32', sCk, sN, 2), salu('s_add_u32', sCk, sCk, sW), salu('s_lshl_b32', sCk, sCk, 8), salu('s_add_u32', sCk, sCk, CKV_OFF)]
    ksteps = []
    for seg in cfg.order:
        for u in range(2 if seg == 'hh' else 4): ksteps.append((seg, u))
    ktok = [Tok(f"K{i}") for i in range(18)]
    def kloc(i):
        if i <= 10: e = [0, 1, 2, 0, 1, 2, 3, 0, 1, 2, 3][i]; return (sPw, e*4096)
        if i == 11: return (sPw, 0)
        if i <= 16: return (sRing, Qoff(15 + i - 12))
        return (sPw, 4096)
    def kdma(i):
        seg, u = ksteps[i]; sb, off = kloc(i); R = []
        for img in range(4):
            if seg == 'o': R += dma(vW2, rWO, sWob, (32*u + 8*img)*1024, sb, off + img*1024, ktok[i])
            elif seg == 'hh':
                R += dma(vW2, rW2, sWhh, (1536 + 32*u + 8*img)*1024, sb, off + img*1024, ktok[i])
            else:
                ib = int(seg[1]); R += dma(vW2, rW2, sW2b, (96*u + 32*ib + 8*img)*1024, sb, off + img*1024, ktok[i])
        return R
    sWhh = sW1wq
    whh_setup = [salu('s_lshl_b32', sWhh, sW, 16), salu('s_lshl_b32', sT, sN2, 7), salu('s_add_u32', sWhh, sWhh, sT)]
    def kreads(i, dst):
        sb, off = kloc(i)
        R = [valu('v_add_u32', vA[0], sb, vU0)] + [valu('v_xor_b32', vA[cg], 32*cg, vA[0]) for cg in (1, 2, 3)]
        o2 = off
        if off + 3072 + 2048 >= 65536:
            R = [salu('s_add_u32', sT, sb, off), valu('v_add_u32', vA[0], sT, vU0)] + R[1:]; o2 = 0
        R.append(need(ktok[i]))
        for cg in range(4):
            for j in range(2):
                R.append(ds_read(dst(cg).sub(2*j, 2), vA[cg], o2 + j*2048, tr=True))
        return R

    def cross(vals, op):
        a, b, c, d = vals
        R = [permswap(16, a, b), permswap(16, c, d), valu(op, a, a, b), valu(op, c, c, d), permswap(32, a, c), valu(op, a, a, c),
             valu('v_mov_b32', c, a), permswap(32, a, c), valu('v_mov_b32', b, a), valu('v_mov_b32', d, c), permswap(16, a, b), permswap(16, c, d)]
        return R
    def softmax(tok_in):
        R = []
        for tg in range(2): R.append(ds_read(FR[tg], vHand, tg*1024, tok=tok_in))
        for h in range(2):
            for tg in range(2): R.append(mfma16(Pt(2*h + tg), PHI.sub(2*h, 4), FR[tg], 0))
        for u in range(4):
            p = Pt(u)
            R += [valu('v_max3_f32', mx[u], p[0], p[1], p[2]), valu('v_min3_f32', nm[u], p[0], p[1], p[2])]
        for u in range(4):
            p = Pt(u)
            R += [valu('v_max_f32', mx[u], mx[u], p[3]), valu('v_min_f32', nm[u], nm[u], p[3])]
        A = cross(mx, 'v_max_f32'); B = cross(nm, 'v_min_f32')
        for a, b in zip(A, B): R += [a, b]
        for u in range(4): R += [valu('v_mul_f32', mx[u], sL, mx[u]), valu('v_mul_f32', nm[u], sL, nm[u])]
        for u in range(4):
            p = Pt(u); e = Em(u)
            for r in range(4): R += [valu('v_fma_f32', e[r], p[r], sNL, nm[u]), valu('v_fma_f32', p[r], p[r], sL, -mx[u])]
            for r in range(4): R += [valu('v_exp_f32', e[r], e[r]), valu('v_exp_f32', p[r], p[r])]
        for u in range(4):
            p = Pt(u); e = Em(u)
            R += [valu('v_add_f32', Sp[u], p[0], p[1]), valu('v_add_f32', Sm[u], e[0], e[1]), valu('v_add_f32', tp[0], p[2], p[3]), valu('v_add_f32', tp[1], e[2], e[3]),
                  valu('v_add_f32', Sp[u], Sp[u], tp[0]), valu('v_add_f32', Sm[u], Sm[u], tp[1])]
        A = cross(Sp, 'v_add_f32'); B = cross(Sm, 'v_add_f32')
        for a, b in zip(A, B): R += [a, b]
        for u in range(4): R += [valu('v_rcp_f32', Sp[u], Sp[u]), valu('v_rcp_f32', Sm[u], Sm[u])]
        for u in range(4):
            p = Pt(u); e = Em(u); f = PF(u)
            for r in range(4): R += [valu('v_mul_f32', p[r], p[r], Sp[u]), valu('v_mul_f32', e[r], e[r], Sm[u])]
            R += [cvt(f[0], p[0], p[1]), cvt(f[1], p[2], p[3]), cvt(f[2], e[0], e[1]), cvt(f[3], e[2], e[3])]
        return R
    D2 = lambda h, tg, s: V(40 + 4*((h*2 + tg)*2 + s), 4)
    PH2 = lambda h, s: V(72 + 4*(h*2 + s), 4)
    D3 = lambda q: V(40 + 4*q, 4)
    D3z = lambda q: V(56 + 4*q, 4)
    tvr = Tok('vread'); tsc = Tok('scratch')
    def k_transpose():
        R = []
        for h in range(2):
            for tg in range(2):
                for s in range(2): R.append(mfma16(D2(h, tg, s), PF(2*h + tg), IDN.sub(2*s, 4), 0))
        for h in range(2):
            for s in range(2):
                f = PH2(h, s); a, b = D2(h, 0, s), D2(h, 1, s)
                R += [cvt(f[0], a[0], a[1]), cvt(f[1], a[2], a[3]), cvt(f[2], b[0], b[1]), cvt(f[3], b[2], b[3])]
        return R
    def k_kv():
        R = []
        for h in range(2):
            for s in range(2):
                R += [mfma16(D3(2*h + s), PH2(h, s), FR[h], 0), mfma16(D3z(2*h + s), PH2(h, s), ONE, 0)]
        R += [salu('s_add_u32', sT, sPw, 3*4096), valu('v_add_u32', vA[0], sT, vL16),
              salu('s_lshl_b32', sT, sW, 8), salu('s_add_u32', sT, sT, ZP), valu('v_and_b32', vA[1], 0x30, vL), valu('v_add_u32', vA[1], sT, vA[1])]
        for q in range(4): R += [ds_write(vA[0], D3(q), q*1024, tok=tsc), ds_write(vA[1], D3z(q), q*64, tok=tsc)]
        return R
    tkvs = Tok('kvstore'); tsr = Tok('scread')
    def kv_reduce():
        Kp = lambda w: V(72 + 4*w, 4); Zp = lambda w: V(88 + 4*w, 4)
        R = [salu('s_lshl_b32', sT, sW, 10), salu('s_add_u32', sT, sT, 3*4096), valu('v_add_u32', vA[0], sT, vL16),
             salu('s_lshl_b32', sT, sW, 6), salu('s_add_u32', sT, sT, ZP), valu('v_and_b32', vA[1], 0x30, vL), valu('v_add_u32', vA[1], sT, vA[1])]
        for w in range(4): R += [ds_read(Kp(w), vA[0], w*P_SZ, tok=tsr), ds_read(Zp(w), vA[1], w*256, tok=tsr)]
        for X_ in (Kp, Zp):
            for r in range(4): R += [valu('v_add_f32', X_(0)[r], X_(0)[r], X_(1)[r]), valu('v_add_f32', X_(2)[r], X_(2)[r], X_(3)[r])]
            for r in range(4): R.append(valu('v_add_f32', X_(0)[r], X_(0)[r], X_(2)[r]))
        R += [valu('v_and_b32', vA[2], 15, vL), v_cmp('v_cmp_eq_u32', vcc, 0, vA[2]), valu('v_and_b32', vA[3], 0x30, vL),
              salu('s_mul_i32', sT, sW, 960), salu('s_sub_u32', sT, 4096, sT), valu('v_add_u32', vA[3], sT, vA[3]),
              valu('v_mov_b32', vA[2], 0x7ffffff0), v_cndmask(vA[2], vA[2], vA[3], vcc),
              salu('s_mul_i32', sT, sM1, KVP_STRIDE), salu('s_add_u32', sT, sT, sKV),
              buf_store(Kp(0), vL16, rWS, sT, 0, 'sc1', tok=tkvs), buf_store(Zp(0), vA[2], rWS, sT, 0, 'sc1', tok=tkvs)]
        return R
    tkp = Tok('kvpoll'); tkl = Tok('kvload'); tkf = Tok('kvf')
    GK = lambda p: V(16 + 4*p, 4); GZ = V(80, 4)
    def kv_gather_loads():
        R = []
        R += [valu('v_and_b32', vA[2], 15, vL), valu('v_mul_u32_u24', vA[2], KVP_STRIDE, vA[2]), valu('v_and_b32', vA[3], 0x30, vL), valu('v_add_u32', vA[2], vA[2], vA[3]),
              salu('s_mul_i32', sT, sW, 960), salu('s_sub_u32', sT, 4096, sT), valu('v_add_u32', vA[2], sT, vA[2]),
              buf_load(GZ, vA[2], rWS, sKV, 0, 'sc1', tok=tkl)]
        for p in range(16):
            o = sO[p & 1]
            R += [salu('s_add_u32', o, sKV, p*KVP_STRIDE), buf_load(GK(p), vL16, rWS, o, 0, 'sc1', tok=tkl)]
        return R
    def kv_gather_sum():
        R = []
        for sh in (8, 4, 2, 1):
            for r in range(4): R.append(valu('v_add_f32_dpp', GZ[r], GZ[r], GZ[r], extra=f"row_ror:{sh} row_mask:0xf bank_mask:0xf"))
        step = 1
        while step < 16:
            for p in range(0, 16, 2*step):
                for r in range(4): R.append(valu('v_add_f32', GK(p)[r], GK(p)[r], GK(p + step)[r]))
            step *= 2
        k = GK(0)
        R += [cvt(k[0], k[0], k[1]), cvt(k[1], k[2], k[3]), cvt(GZ[0], GZ[0], GZ[1]), cvt(GZ[1], GZ[2], GZ[3]),
              salu('s_lshr_b32', sT, sW, 1), salu('s_lshl_b32', sT, sT, 10), salu('s_and_b32', sO[0], sW, 1), salu('s_lshl_b32', sO[0], sO[0], 3),
              salu('s_add_u32', sT, sT, sO[0]), salu('s_add_u32', sT, sT, KVF), valu('v_add_u32', vA[0], sT, vL16),
              ds_write(vA[0], k.sub(0, 2), 0, tok=tkf), ds_write(vA[0], GZ.sub(0, 2), 2048, tok=tkf)]
        return R
    to = Tok('ostore')
    def o_compute():
        KVf = lambda h: V(16 + 4*h, 4); Zf = lambda h: V(24 + 4*h, 4)
        N = lambda u: V(32 + 4*u, 4); Dn = lambda u: V(48 + 4*u, 4); g = [V(64), V(65)]
        R = [valu('v_add_u32', vA[0], KVF, vL16), valu('v_and_b32', vA[1], 15, vL), valu('v_lshlrev_b32', vA[1], 2, vA[1]),
             salu('s_lshl_b32', sT, sW, 7), salu('s_add_u32', sT, sT, GBUF), valu('v_add_u32', vA[1], sT, vA[1])]
        for h in range(2): R += [ds_read(Zf(h), vA[0], 2048 + h*1024), ds_read(KVf(h), vA[0], h*1024)]
        for tg in range(2): R.append(ds_read(g[tg], vA[1], tg*64))
        for u in range(4): R.append(mfma16(Dn(u), Zf(u >> 1), PF(u), 0))
        for u in range(4): R.append(mfma16(N(u), KVf(u >> 1), PF(u), 0))
        R.append(salu('s_mov_b32', sT, f2u(1e-6)))
        for u in range(4): R.append(valu('v_add_f32', Dn(u)[0], sT, Dn(u)[0]))
        for u in range(4): R.append(valu('v_rcp_f32', Dn(u)[0], Dn(u)[0]))
        for u in range(4): R.append(valu('v_mul_f32', Dn(u)[0], Dn(u)[0], g[u & 1]))
        for u in range(4):
            for r in range(4): R.append(valu('v_mul_f32', N(u)[r], N(u)[r], Dn(u)[0]))
        R.append(salu('s_add_u32', sO[0], sH, pos['o']*4096))
        for tg in range(2):
            f = V(68 + 4*tg, 4); a, b = N(tg), N(2 + tg)
            R += [cvt(f[0], a[0], a[1]), cvt(f[1], a[2], a[3]), cvt(f[2], b[0], b[1]), cvt(f[3], b[2], b[3]),
                  buf_store(f, vL16, rWS, sO[0], tg*1024, 'sc1', tok=to)]
        return R

    tmisc = Tok('misc'); tinit = Tok('initld')
    def misc_dma():
        r = rPH
        R = [salu('s_lshl_b32', sT, sN, 10), salu('s_add_u32', r[0], r[0], sT), salu('s_addc_u32', r[1], r[1], 0),
             s_cmp('s_cmp_eq_u32', sW, 0), salu('s_cselect_b32', r[0], rGW[0], r[0]), salu('s_cselect_b32', r[1], rGW[1], r[1]),
             salu('s_mov_b32', sT, WPHI), salu('s_cselect_b32', sT, GATE, sT), s_cmp('s_cmp_ge_u32', sW, 2), salu('s_cselect_b32', r[2], 0, 1024), salu('s_cselect_b32', m0, ZERO, sT),
             nop(1), buf_dma(vL16, r, 0, tok=tmisc)]
        return R
    def phi_read():
        return [valu('v_lshlrev_b32', vA[0], 3, vL), valu('v_add_u32', vA[0], WPHI, vA[0]),
                ds_read(PHI.sub(0, 2), vA[0], 0, tr=True), ds_read(PHI.sub(4, 2), vA[0], 512, tr=True),
                valu('v_mov_b32', PHI[2], 0), valu('v_mov_b32', PHI[3], 0)]

    tk, tv, tq = Tok('rk'), Tok('rv'), Tok('rq')
    sm_k = softmax(tk); sm_q = softmax(tq)
    items = [
        (2, phi_read()),
        (3, sm_k),
        (5, k_transpose()),
        (5, k_kv()),
        ('bar', 'scratch'),
        (0, kv_reduce()),
        (7, sm_q),
        (cfg.kv_check, [readfirst(sStat, vP), spin_until('kv', vP, vCnt, rWS, sCk, sStat, [f"s_cmp_ge_u32 {sStat}, 16"])]),
        (0, kv_gather_loads()),
        ('skip', 1),
        (0, kv_gather_sum()),
        ('bar', 'kvf'),
        (0, o_compute()),
    ]
    pre_p = {7: [buf_load(vP, vCnt, rDBG, 0, 0, 'sc1', tok=tinit)],
             cfg.kv_flag - 1: [readfirst(sStat, vP), spin_until('Binit', vP, vCnt, rDBG, 0, sStat, [f"s_cmp_lg_u32 {sStat}, 0"])],
             cfg.kv_flag: [need(tkvs), valu('v_mov_b32', vD, 1), buf_atomic_add(vD, vCnt, rWS, sCk)],
             cfg.kv_check - 1: [buf_load(vP, vCnt, rWS, sCk, 0, 'sc1', tok=tkp)]}
    kissue = {2: 0, 3: 1, 4: 2, 6: 3, 7: 4, 8: 5, 10: 6, 11: 7, 12: 8, 13: 9, 14: 10, 15: 11, 17: 12, 18: 13, 19: 14}
    kread = {6: 0, 7: 1, 8: 2, 10: 3, 11: 4, 12: 5, 14: 6, 15: 7}
    L += [need(stok[0]), barrier()] + st('bar0')
    L += slot_dma(2) + slot_dma(3) + [need(stok[1]), barrier()] + st('bar1')
    L += slot_dma(4) + misc_dma() + [need(stok[2]), need(tmisc), barrier()] + st('bar2')
    ACC = lambda cg, tg: V(64 + 16*cg + 4*tg, 4)
    land = {}; wst = {}; htok = [Tok(f"h{i}") for i in range(18)]
    segstart = {pos[s]: s for s in cfg.order}
    def poll_load(): return [buf_load(vP, vCnt, rWS, sCp, 0, 'sc1')]
    def check(seg):
        f = FIELD[seg]
        return [readfirst(sStat, vP), spin_until(f'p{seg}', vP, vCnt, rWS, sCp, sStat, [f"s_bfe_u32 {sT}, {sStat}, {hex(f | (6 << 16))}", f"s_cmp_ge_u32 {sT}, 8"])]
    def hloads(i):
        seg, u = ksteps[i]; b = land[i]; R = []
        if i in segstart: R += check(segstart[i])
        o = sO[par[0]]; par[0] ^= 1
        R.append(salu('s_add_u32', o, sHc, i*4096))
        for t in range(4):
            dst = V(b + 4*([0, 2, 1, 3][t] if seg == 'hh' else t), 4)
            R.append(buf_load(dst, vL16, rWS, o, t*1024, 'sc1', tok=htok[i]))
        return R
    pool = [16, 32, 48]
    cur = []; scratch_free_at = None; log = []; tsr_needed = False
    for s in range(2, 20):
        fixed = list(pre_p.get(s, []))
        if s == cfg.kv_flag: assert any(i.tok is tkvs for i in L) and not any(i.tok is tkvs for i in cur)
        if s in kread: fixed += kreads(kread[s], lambda cg, i=kread[s]: RES(i, cg))
        if s == 5:
            assert any(i.kind == 'mfma' and i.srcab & FR[1].regs() for i in L), "k fragments not consumed before v overwrites them"
            fixed += [ds_read(FR[h], vHand, h*1024, tok=tv) for h in range(2)]
        if s + 3 < 20: fixed += slot_dma(s + 3)
        if s == 2: fixed += whh_setup
        if s in kissue:
            i = kissue[s]
            if s in kread: fixed.append(drain_lgkm())
            if i == 6: assert scratch_free_at is not None and scratch_free_at <= s, ("scratch still busy", s, scratch_free_at)
            fixed += kdma(i)
        L += fixed
        quota = cfg.b_quota_early if s < 10 else cfg.b_quota_late
        if s == 19: quota = 10000
        used = 0; needbar = []
        while used < quota:
            if not cur:
                if not items: break
                e, lst = items[0]
                if e == 'bar':
                    items.pop(0); needbar.append(tsc if lst == 'scratch' else tkf)
                    if lst == 'scratch': scratch_free_at = s + 2
                    log.append((s, 'bar ' + lst))
                    if s == 19: raise AssertionError("barrier item in last period")
                    break
                if e == 'skip':
                    items.pop(0); break
                if e > s: break
                items.pop(0); cur = list(lst)
                log.append((s, len(lst)))
            i = cur.pop(0); L.append(i); used += i.cost if i.kind in VALU_KINDS or i.kind == 'mfma' else 0.25
        L += [need(t) for t in needbar]
        if s == 3: L.append(need(tk))
        if s == 5: L.append(need(tv))
        if not tsr_needed and any(i.tok is tsr for i in L):
            assert not any(i.tok is tsr for i in cur)
            L.append(need(tsr)); tsr_needed = True
            assert scratch_free_at == s + 1
        if s == 19:
            assert not items and not cur
            if cfg.stopafter_g1:
                pass
            else:
                for i in range(3):
                    land[i] = pool.pop(0); L += hloads(i)
        if s == 18: L += poll_load()
        if s + 1 < 20: L.append(need(stok[s + 1]))
        L += [barrier()] + (st(f'bar{s+1}') if (s + 1) % 2 == 0 or s >= 16 else [])
        L.append(comment(f"B bar_{s+1}"))
    print("B schedule log:", log, file=sys.stderr)

    if cfg.stopafter_g1:
        L += [barrier(), need(to), valu('v_mov_b32', vD, 1 << FIELD['o']), buf_atomic_add(vD, vCnt, rWS, sC)]
        L += st('end') + st.flush(V(16), V(17), 4) + [drain_vm(), raw("s_endpgm", kind='branch')]
        return L, st
    plan = {i: [] for i in range(18)}; nxt = 3; pl = list(pool)
    for i in range(18):
        if 8 <= i + 1 < 18: wst[i + 1] = pl.pop(0)
        n_ = 0
        while nxt < 18 and n_ < 2 and pl and nxt <= i + cfg.lead:
            land[nxt] = pl.pop(0); plan[i].append(nxt); nxt += 1; n_ += 1
        pl.append(land[i]); pl.append(128 + 16*i if i < 8 else wst[i])
    assert nxt == 18
    pollat = {}
    for i in range(18):
        for n_ in plan[i]:
            if n_ in segstart: pollat.setdefault(max(i - cfg.poll_lead, 0), []).append(n_)
    print("GEMM2 plan:", plan, "polls", pollat, file=sys.stderr)
    oflag_at = 3
    for i in range(18):
        pre = []; fill = []
        if i == 1: pre += [barrier(), comment("B bar_21")]; fill += kdma(16)
        if i == 0: fill += kdma(15)
        if i == 9: fill += kdma(17)
        if i == oflag_at: fill += [need(to), valu('v_mov_b32', vD, 1 << FIELD['o']), buf_atomic_add(vD, vCnt, rWS, sC)]
        j = i + 1
        if 8 <= j < 18: fill += kreads(j, lambda cg, b=wst[j]: V(b + 4*cg, 4))
        for n_ in plan[i]: fill += hloads(n_)
        if i in pollat: fill += poll_load()
        Wf = (lambda cg, i=i: RES(i, cg)) if i < 8 else (lambda cg, b=wst.get(i): V(b + 4*cg, 4))
        Hf = lambda tg, b=land[i]: V(b + 4*tg, 4)
        if ksteps[i][0] == 'hh':
            b = land[i]
            pre += [v_swap(V(b + 2), V(b + 4)), v_swap(V(b + 3), V(b + 5)), v_swap(V(b + 10), V(b + 12)), v_swap(V(b + 11), V(b + 13))]
        if i in segstart: pre += st(f'g2_{segstart[i]}')
        L += pre
        M = [mfma16(ACC(cg, tg), Wf(cg), Hf(tg), 0 if i == 0 else ACC(cg, tg)) for tg in range(4) for cg in range(4)]
        per = max(1, math.ceil(len([f for f in fill if f.cost]) / 14))
        for m in M:
            L.append(m)
            c = 0
            while fill and (c < per or fill[0].cost == 0):
                f = fill.pop(0); L.append(f); c += 1 if f.cost else 0
        L += fill
    L += st('g2_end')
    L += [valu('v_add_u32', vA[0], sPw, vL16)]
    for tg in range(4):
        for cg in range(4): L.append(ds_write(vA[0], ACC(cg, tg), tg*4096 + cg*1024))
    L += [drain_lgkm(), barrier()]
    R_ = lambda k, cg: V(16 + 16*k + 4*cg, 4)
    L += [salu('s_lshl_b32', sT, sW, 12), valu('v_add_u32', vA[0], sT, vL16)]
    for k in range(4):
        for cg in range(4): L.append(ds_read(V(128 + 16*k + 4*cg, 4), vA[0], k*P_SZ + cg*1024))
    Rk = lambda k, cg: V(128 + 16*k + 4*cg, 4)
    for cg in range(4):
        for r in range(4): L += [valu('v_add_f32', Rk(0, cg)[r], Rk(0, cg)[r], Rk(1, cg)[r]), valu('v_add_f32', Rk(2, cg)[r], Rk(2, cg)[r], Rk(3, cg)[r])]
        for r in range(4): L.append(valu('v_add_f32', Rk(0, cg)[r], Rk(0, cg)[r], Rk(2, cg)[r]))
    L += [valu('v_and_b32', vA[1], 15, vL), valu('v_lshlrev_b32', vA[1], 10, vA[1]), valu('v_bfe_u32', vA[2], vL, 4, 1), valu('v_lshlrev_b32', vA[2], 5, vA[2]),
          valu('v_add_u32', vA[1], vA[1], vA[2]), valu('v_lshrrev_b32', vA[2], 5, vL), valu('v_lshlrev_b32', vA[2], 4, vA[2]), valu('v_add_u32', vA[1], vA[1], vA[2]),
          salu('s_lshl_b32', sT, sM2, 2), salu('s_add_u32', sT, sT, sW), salu('s_lshl_b32', sT, sT, 14), salu('s_lshl_b32', sO[0], sN2, 7), salu('s_add_u32', sT, sT, sO[0])]
    for pr in range(2):
        f = V(16 + 4*pr, 4); a, b = Rk(0, 2*pr), Rk(0, 2*pr + 1)
        L += [cvt(f[0], a[0], a[1]), cvt(f[1], a[2], a[3]), cvt(f[2], b[0], b[1]), cvt(f[3], b[2], b[3]),
              permswap(16, f[0], f[2]), permswap(16, f[1], f[3]), buf_store(f, vA[1], rOUT, sT, pr*64)]
    L += st('end') + st.flush(V(32), V(33), 4)
    L += [drain_vm(), raw("s_endpgm", kind='branch')]
    return L, st

def build(path):
    Tok.n = 0
    C = gen_common()
    A, sa = genA()
    B, sb = genB()
    pc, _ = finalize(C); pa, ma = finalize(A); pb, mb = finalize(B)
    print("A:", len(pa), dict(stats(pa)), "maxvm", ma, file=sys.stderr)
    print("B:", len(pb), dict(stats(pb)), "maxvm", mb, file=sys.stderr)
    hdr = open('cdna_kernels/' + KNAME[:-7] + '.s.ref').read().split('\n') if False else None
    out = []
    out.append(f"; @launch grid=(256,1,1) block=(512,1,1) lds={LDS_BYTES}")
    out.append('.amdgcn_target "amdgcn-amd-amdhsa--gfx950"\n.text')
    out.append(f".globl {KNAME}\n.p2align 8\n.type {KNAME},@function\n{KNAME}:")
    out.append(text(pc) + text(pa) + ".p2align 6\n" + text(pb) + "L_end:\ns_endpgm")
    out.append(f""".section .rodata,"a"
.p2align 6
.amdhsa_kernel {KNAME}
  .amdhsa_next_free_vgpr 256
  .amdhsa_next_free_sgpr 102
  .amdhsa_accum_offset 256
  .amdhsa_group_segment_fixed_size 0
  .amdhsa_kernarg_size 96
  .amdhsa_user_sgpr_count 2
  .amdhsa_user_sgpr_kernarg_segment_ptr 1
  .amdhsa_system_sgpr_workgroup_id_x 1
  .amdhsa_float_denorm_mode_32 3
.end_amdhsa_kernel
""")
    open(path, 'w').write("\n".join(out))
    return sa.names, sb.names

if __name__ == '__main__':
    import json
    path = sys.argv[1] if len(sys.argv) > 1 else 'k.s'
    for a in sys.argv[2:]:
        k, v = a.split('=')
        setattr(cfg, k, v.split(',') if k == 'order' else int(v))
    names = build(path)
    json.dump(names, open(path + '.stamps.json', 'w'))
```
